```python
import torch

def _softmax(x, axis=-1):
    return torch.softmax(x, dim=axis)
def _gelu(x):
    return torch.nn.functional.gelu(x, approximate="tanh")
def _silu(x):
    return torch.nn.functional.silu(x)
def _sigmoid(x):
    return torch.sigmoid(x)
def _layernorm(x, axis=-1, eps=1e-5):
    m = x.mean(dim=axis, keepdim=True)
    v = x.var(dim=axis, keepdim=True, unbiased=False)
    return (x - m) / torch.sqrt(v + eps)
def _scatter_add(tgt, idx, src, axis=0):
    return tgt.clone().index_add_(axis, idx, src)
def _segment_sum(src, seg, n):
    out = torch.zeros((n,) + src.shape[1:], dtype=src.dtype)
    return out.index_add_(0, seg, src)
def _pad(x, pw):
    flat = tuple(v for pair in reversed(pw) for v in pair)
    return torch.nn.functional.pad(x, flat)

kernel_name = 'parallel_sum__sliding_block_cached__glu_gated_swiglu__decode'

def setup_inputs():

    _w = (lambda a: (lambda t: t.to(torch.bfloat16) if t.is_floating_point() else t)(torch.as_tensor(a)))
    def _A_setup():
        B, Sq, D = 1, 1, 512
        Hq, Hkv, Sk, Dh = 32, 8, 65536, 128
        assert Hq % Hkv == 0, (Hq, Hkv)
        return {
            "x": _w((lambda *s: torch.randn(*s, dtype=torch.bfloat16) * 0.05)(B, Sq, D)),
            "k_cache": _w((lambda *s: torch.randn(*s, dtype=torch.bfloat16) * 1.6)(B, Hkv, Sk, Dh)),
            "v_cache": _w((lambda *s: torch.randn(*s, dtype=torch.bfloat16) * 0.8)(B, Hkv, Sk, Dh)),
            "wq": _w((lambda *s: torch.randn(*s, dtype=torch.bfloat16) * 1.6)(D, Hq * Dh) * (D ** -0.5)),
            "wo": _w((lambda *s: torch.randn(*s, dtype=torch.bfloat16) * 0.8)(Hq * Dh, D) * ((Hq * Dh) ** -0.5)),
        }
    _A_in = _A_setup()

    def _B_setup():
        B, S, D, F = 1, 1, 512, 1792
        return {
            "x": _w((lambda *s: torch.randn(*s, dtype=torch.bfloat16) * 0.05)(B, S, D)),
            "w1": _w((lambda *s: torch.randn(*s, dtype=torch.bfloat16) * 0.4)(D, F) * (2.0 / D) ** 0.5),
            "w3": _w((lambda *s: torch.randn(*s, dtype=torch.bfloat16) * 0.4)(D, F) * (2.0 / D) ** 0.5),
            "w2": _w((lambda *s: torch.randn(*s, dtype=torch.bfloat16) * 0.4)(F, D) * (2.0 / F) ** 0.5),
        }
    _B_in = _B_setup()

    return {
        "A_x": _A_in["x"],
        "A_k_cache": _A_in["k_cache"],
        "A_v_cache": _A_in["v_cache"],
        "A_wq": _A_in["wq"],
        "A_wo": _A_in["wo"],
        "B_x": _B_in["x"],
        "B_w1": _B_in["w1"],
        "B_w3": _B_in["w3"],
        "B_w2": _B_in["w2"],
    }

def reference(A_x, A_k_cache, A_v_cache, A_wq, A_wo, B_x, B_w1, B_w3, B_w2):
    def _A_ref(x, k_cache, v_cache, wq, wo):
        B, Sq, D = x.shape
        Hq, Dh = 32, 128
        Hkv, Sk = k_cache.shape[1], k_cache.shape[2]
        W = min(4096, max(256, Sk // 4))
        rep = Hq // Hkv
        q = (lambda x, *d: x.permute(*d))((x @ wq).reshape(B, Sq, Hq, Dh), 0, 2, 1, 3)
        k = (lambda x, n, axis: torch.repeat_interleave(x, n, dim=axis))(k_cache[:, :, Sk - W:, :], rep, axis=1)
        v = (lambda x, n, axis: torch.repeat_interleave(x, n, dim=axis))(v_cache[:, :, Sk - W:, :], rep, axis=1)
        scores = torch.einsum("bhqd,bhkd->bhqk", q, k) * (Dh ** -0.5)
        p = _softmax(scores, axis=-1)
        o = torch.einsum("bhqk,bhkd->bhqd", p, v)
        return (lambda x, *d: x.permute(*d))(o, 0, 2, 1, 3).reshape(B, Sq, Hq * Dh) @ wo

    def _B_ref(x, w1, w3, w2):
        gate = torch.einsum("bsd,df->bsf", x, w1)
        up = torch.einsum("bsd,df->bsf", x, w3)
        h = _silu(gate) * up
        out = torch.einsum("bsf,fd->bsd", h, w2)
        return out

    x = A_x
    xn = _layernorm(x, axis=-1)
    return x + _A_ref(xn, A_k_cache, A_v_cache, A_wq, A_wo) + _B_ref(xn, B_w1, B_w3, B_w2)
```

```python
import sys

NAME = 'parallel_sum__sliding_block_cached__glu_gated_swiglu__decode_kernel'

HEADER = '''; Kernarg layout for this problem (96 bytes, ptrs only, base s[0:1]):
'''

WS_EPOCH = 0x0
WS_HINT = 0x1000
WS_QA = 0x10000
WS_QB = 0x30000
WS_FP = 0x50000
WS_OS = 0x100000
WS_L1 = 0x200000
WS_L2 = 0x300000
WS_ST = 0x380000
WS_SIZE = 0x400000
L_XN4 = 0x0000
L_XN5 = 0x0400
L_Q = 0x0800
L_FLG = 0x0C00
L_M = 0x0C40
L_L = 0x0C80
L_COEF = 0x0D00
L_HC = 0x0D20
L_OP = 0x1000
LDS_SIZE = 0x3000

L2E = 0x3fb8aa3b
SCALE = 0x3db504f3
TAGC = 0x9E3779B9


class Gen:
    def __init__(self, nt='nt', stamps=False, bound=20000):
        self.c = []
        self.nt = nt
        self.stamps = stamps
        self.bound = bound
        self.lbl = 0
        self.nst = 0

    def A(self, s):
        for line in s.strip('\n').split('\n'):
            self.c.append('    ' + line.strip() if not line.strip().endswith(':') else line.strip())

    def label(self, p='L'):
        self.lbl += 1
        return f'{p}_{self.lbl}'

    def stamp(self, idx):
        if self.stamps:
            self.A(f's_memrealtime s[{80+2*idx}:{81+2*idx}]')

    def stamp_flush(self, n):
        if not self.stamps:
            return
        A = self.A
        A('s_waitcnt lgkmcnt(0)')
        A('s_lshl_b32 s6, s2, 3\ns_add_u32 s6, s6, s3\ns_lshl_b32 s6, s6, 6')
        A(f's_add_u32 s6, s6, {WS_ST}')
        A('s_mov_b64 exec, 1')
        for i in range(n):
            A(f'v_mov_b32 v8, s{80+2*i}\nv_mov_b32 v9, s6')
            A(f'buffer_store_dword v8, v9, s[40:43], 0 offen offset:{4*i}')
            A('s_nop 1')

    def store_mode(self, data, voff, soff, offset=0):
        A = self.A
        ls, ld = self.label('L_slow'), self.label('L_done')
        A(f's_cmp_eq_u32 s61, 0\ns_cbranch_scc1 {ls}')
        A(f'buffer_store_dwordx4 {data}, {voff}, s[40:43], {soff} offen offset:{offset}')
        A(f's_branch {ld}')
        A(f'{ls}:')
        A(f'buffer_store_dwordx4 {data}, {voff}, s[40:43], {soff} offen offset:{offset} sc1')
        A(f'{ld}:')

    def red_hi3(self, regs, temps, op='v_add_f32'):
        A = self.A
        A('s_nop 1')
        for r in regs:
            A(f'{op}_dpp {r}, {r}, {r} row_ror:8 row_mask:0xf bank_mask:0xf')
        for sw in ('v_permlane16_swap_b32', 'v_permlane32_swap_b32'):
            for r, t in zip(regs, temps):
                A(f'v_mov_b32 {t}, {r}')
            A('s_nop 1')
            for r, t in zip(regs, temps):
                A(f'{sw} {r}, {t}')
            A('s_nop 1')
            for r, t in zip(regs, temps):
                A(f'{op} {r}, {r}, {t}')
            A('s_nop 1')

    def red64(self, r, t):
        A = self.A
        for ctl in ('quad_perm:[1,0,3,2]', 'quad_perm:[2,3,0,1]', 'row_ror:4', 'row_ror:8'):
            A('s_nop 1')
            A(f'v_add_f32_dpp {r}, {r}, {r} {ctl} row_mask:0xf bank_mask:0xf')
        for sw in ('v_permlane16_swap_b32', 'v_permlane32_swap_b32'):
            A(f'v_mov_b32 {t}, {r}\ns_nop 1\n{sw} {r}, {t}\ns_nop 1\nv_add_f32 {r}, {r}, {t}')

    def selectors(self, base, only_lo8):
        A = self.A
        A('v_and_b32 v10, 7, v2')
        A('v_and_b32 v11, 1, v2')
        A('v_lshrrev_b32 v12, 1, v10')
        if only_lo8:
            A('v_and_b32 v13, 8, v2\nv_or_b32 v12, v12, v13')
        A('v_cmp_eq_u32 vcc, 1, v11')
        A('v_mov_b32 v13, 0x0c0c0100\nv_mov_b32 v14, 0x01000c0c')
        A('v_cndmask_b32 v13, v13, v14, vcc')
        A('v_mov_b32 v14, 0x0c0c0302\nv_mov_b32 v15, 0x03020c0c')
        A('v_cndmask_b32 v14, v14, v15, vcc')
        A('v_mov_b32 v15, 0x0c0c0c0c')
        for w in range(4):
            A(f'v_cmp_eq_u32 vcc, {w}, v12')
            A('s_nop 1')
            A(f'v_cndmask_b32 v{base+2*w}, v15, v13, vcc')
            A(f'v_cndmask_b32 v{base+2*w+1}, v15, v14, vcc')

    def poll_check_branch(self, tagregs, tmp, tmp2, l_ok):
        A = self.A
        A(f'v_xor_b32 {tmp}, s60, {tagregs[0]}')
        for t in tagregs[1:]:
            A(f'v_xor_b32 {tmp2}, s60, {t}\nv_or_b32 {tmp}, {tmp}, {tmp2}')
        A(f'v_cmp_ne_u32 vcc, 0, {tmp}')
        A('s_nop 1')
        A('s_cmp_eq_u64 vcc, 0')
        A(f's_cbranch_scc1 {l_ok}')

    def layernorm(self, ldsbase):
        A = self.A
        for w in range(4):
            A(f'v_lshlrev_b32 v{144+2*w}, 16, v{8+w}')
            A(f'v_and_b32 v{145+2*w}, 0xffff0000, v{8+w}')
        A('v_add_f32 v12, v144, v145\nv_add_f32 v13, v146, v147\nv_add_f32 v14, v148, v149\nv_add_f32 v15, v150, v151')
        A('v_add_f32 v12, v12, v13\nv_add_f32 v14, v14, v15\nv_add_f32 v12, v12, v14')
        self.red64('v12', 'v13')
        A('v_mul_f32 v12, 0x3b000000, v12')
        A('v_sub_f32 v13, v144, v12\nv_mul_f32 v14, v13, v13')
        for k in range(1, 8):
            A(f'v_sub_f32 v13, v{144+k}, v12\nv_fmac_f32 v14, v13, v13')
        self.red64('v14', 'v13')
        A('v_mul_f32 v14, 0x3b000000, v14')
        A('v_cvt_pk_bf16_f32 v13, v12, v14')
        A('v_lshlrev_b32 v12, 16, v13')
        A('v_and_b32 v14, 0xffff0000, v13')
        A('v_add_f32 v14, 0x3727c5ac, v14')
        A('v_cvt_pk_bf16_f32 v14, v14, v14\nv_lshlrev_b32 v14, 16, v14')
        A('v_sqrt_f32 v14, v14\ns_nop 0')
        A('v_cvt_pk_bf16_f32 v14, v14, v14\nv_lshlrev_b32 v14, 16, v14')
        A('v_rcp_f32 v14, v14')
        for k in range(8):
            A(f'v_sub_f32 v{144+k}, v{144+k}, v12')
        for w in range(4):
            A(f'v_cvt_pk_bf16_f32 v{8+w}, v{144+2*w}, v{145+2*w}')
        for w in range(4):
            A(f'v_lshlrev_b32 v{144+2*w}, 16, v{8+w}')
            A(f'v_and_b32 v{145+2*w}, 0xffff0000, v{8+w}')
        for k in range(8):
            A(f'v_mul_f32 v{144+k}, v{144+k}, v14')
        for w in range(4):
            A(f'v_cvt_pk_bf16_f32 v{8+w}, v{144+2*w}, v{145+2*w}')
        A(f'v_lshlrev_b32 v12, 4, v2')
        A(f'ds_write_b128 v12, v[8:11] offset:{ldsbase}')

    def unit_core(self, ldsbase):
        A = self.A
        A('v_lshrrev_b32 v12, 3, v2\nv_lshlrev_b32 v12, 5, v12\nv_add_u32 v12, s70, v12')
        A(f'ds_read_b128 v[144:147], v12 offset:{ldsbase}')
        A(f'ds_read_b128 v[148:151], v12 offset:{ldsbase+16}')
        self.selectors(152, False)
        A('s_waitcnt lgkmcnt(0)')
        for m in range(16):
            for w in range(4):
                x = f'v{144 + (m >> 1)}'
                A(f'v_perm_b32 v{80+4*m+w}, {x}, {x}, v{152+2*w+(m&1)}')
        for m in range(16):
            A(f's_waitcnt vmcnt({15-m})')
            cin = '0' if m == 0 else 'v[160:163]'
            A(f'v_mfma_f32_16x16x32_bf16 v[160:163], v[{16+4*m}:{19+4*m}], v[{80+4*m}:{83+4*m}], {cin}')
        A('s_nop 7\ns_nop 1')
        for r in range(4):
            A(f'v_mov_b32 v{164+r}, v{160+r}')
        A('s_nop 1')
        for r in range(4):
            A(f'v_permlane32_swap_b32 v{160+r}, v{164+r}')
        A('s_nop 1')
        for r in range(4):
            A(f'v_add_f32_dpp v{160+r}, v{164+r}, v{160+r} row_shl:8 row_mask:0xf bank_mask:0xf')
        A('s_nop 1')
        A('v_mov_b32_dpp v160, v162 row_shr:8 row_mask:0xf bank_mask:0xc')
        A('v_mov_b32_dpp v161, v163 row_shr:8 row_mask:0xf bank_mask:0xc')

    def build(self):
        A = self.A
        nt = self.nt
        A('s_cmp_ge_u32 s2, 256\ns_cbranch_scc1 L_end')
        self.stamp(0)
        A('s_load_dwordx16 s[16:31], s[0:1], 0')
        A('s_load_dwordx8 s[32:39], s[0:1], 64')
        A('v_lshrrev_b32 v1, 6, v0\nv_and_b32 v2, 63, v0\ns_and_b32 s4, s2, 7')
        A('v_readfirstlane_b32 s3, v1')
        A('s_lshr_b32 s5, s2, 3')
        A('v_and_b32 v3, 15, v2\nv_lshrrev_b32 v4, 4, v2')
        A('s_getreg_b32 s62, hwreg(HW_REG_XCC_ID)')
        A('s_and_b32 s62, s62, 15')
        A('s_lshl_b32 s63, s4, 5\ns_add_u32 s63, s63, s5')
        A('s_lshr_b32 s6, s5, 3')
        A('s_lshl_b32 s7, s4, 2\ns_mul_i32 s9, s4, 3\ns_add_u32 s9, s9, 4')
        A('s_cmp_lt_u32 s4, 4\ns_cselect_b32 s7, s7, s9\ns_cselect_b32 s10, 32, 24')
        A('s_add_u32 s64, s6, s7')
        A('s_cmp_lt_u32 s5, s10\ns_cselect_b32 s65, 1, 0')
        A('s_waitcnt lgkmcnt(0)')
        A(f's_load_dword s60, s[38:39], {WS_EPOCH}')
        A(f's_mov_b32 s40, s38\ns_mov_b32 s41, s39\ns_mov_b32 s42, {WS_SIZE}\ns_mov_b32 s43, 0x20000')
        A('s_cmp_eq_u32 s3, 4\ns_cbranch_scc1 L_q')
        A('s_cmp_eq_u32 s3, 5\ns_cbranch_scc1 L_f')
        self.a_path()
        self.q_path()
        self.f_path()
        A('L_end:')
        A('s_endpgm')

    def a_path(self):
        A = self.A
        nt = self.nt
        A('s_lshl_b32 s6, s4, 24\ns_lshl_b32 s7, s5, 15\ns_add_u32 s6, s6, s7')
        A('s_lshl_b32 s7, s3, 13\ns_add_u32 s6, s6, s7')
        A(f's_add_u32 s6, s6, {61440*256}')
        A('s_add_u32 s44, s18, s6\ns_addc_u32 s45, s19, 0\ns_mov_b32 s46, 8192\ns_mov_b32 s47, 0x20000')
        A('s_add_u32 s48, s20, s6\ns_addc_u32 s49, s21, 0\ns_mov_b32 s50, 8192\ns_mov_b32 s51, 0x20000')
        A('s_mov_b32 s8, 4096')
        A('v_lshlrev_b32 v5, 4, v2')
        A('v_lshrrev_b32 v6, 2, v3\nv_lshlrev_b32 v6, 8, v6\nv_and_b32 v7, 3, v3\nv_lshl_add_u32 v6, v7, 6, v6\nv_lshl_add_u32 v6, v4, 4, v6')
        A('s_barrier')
        for u in range(8):
            r = 16 + 4 * u
            A(f'buffer_load_dwordx4 v[{r}:{r+3}], v6, s[44:47], {"s8" if u >= 4 else "0"} offen offset:{(u & 3) * 1024} {nt}')
        for u in range(8):
            r = 48 + 4 * u
            A(f'buffer_load_dwordx4 v[{r}:{r+3}], v5, s[48:51], {"s8" if u >= 4 else "0"} offen offset:{(u & 3) * 1024} {nt}')
        self.stamp(1)
        self.selectors(160, True)
        A('s_lshl_b32 s6, s4, 9')
        A('s_lshr_b32 s7, s5, 3\ns_lshl_b32 s7, s7, 7\ns_add_u32 s6, s6, s7')
        A('s_and_b32 s7, s5, 6\ns_lshl_b32 s7, s7, 4\ns_add_u32 s6, s6, s7')
        A('s_and_b32 s7, s5, 1\ns_lshl_b32 s7, s7, 2\ns_add_u32 s6, s6, s7')
        A('s_lshl_b32 s6, s6, 10\ns_lshl_b32 s7, s3, 8\ns_add_u32 s6, s6, s7')
        A(f's_add_u32 s52, s24, s6\ns_addc_u32 s53, s25, 0\ns_mov_b32 s54, {27*1024+256}\ns_mov_b32 s55, 0x20000')
        A('s_lshl_b32 s6, s64, 3\ns_and_b32 s9, s5, 7\ns_add_u32 s6, s6, s9\ns_lshl_b32 s6, s6, 13\ns_add_u32 s6, s6, s7')
        A('s_cmp_eq_u32 s65, 0\ns_cselect_b32 s6, 0, s6')
        A('s_add_u32 s56, s32, s6\ns_addc_u32 s57, s33, 0\ns_mov_b32 s59, 0x20000')
        A(f's_cmp_eq_u32 s65, 0\ns_cselect_b32 s58, 0, {7*1024+256}')
        A('v_lshlrev_b32 v7, 10, v4\nv_lshl_add_u32 v7, v3, 4, v7')
        A('s_lshl_b32 s6, s3, 10')
        A('v_add_u32 v8, s6, v5')
        A('s_lshl_b32 s66, s4, 14')
        A('v_lshrrev_b32 v9, 3, v2\nv_lshlrev_b32 v9, 5, v9\nv_and_b32 v10, 7, v2\nv_lshl_add_u32 v9, v10, 1, v9')
        A('s_lshl_b32 s6, s3, 8\nv_add_u32 v9, s6, v9')
        A('s_waitcnt lgkmcnt(0)')
        A(f's_add_u32 s60, s60, {TAGC}')
        A('s_barrier')
        self.stamp(2)
        A(f's_add_u32 s67, s66, {WS_QA}')
        for ks in range(4):
            A(f's_add_u32 s{68+ks}, s67, {ks*4096}')
        for ks in range(4):
            A(f'buffer_load_dwordx4 v[{80+4*ks}:{83+4*ks}], v8, s[40:43], s{68+ks} offen sc1')
        A('s_mov_b32 s8, 8192\ns_mov_b32 s9, 16384\ns_mov_b32 s10, 24576\ns_mov_b32 s11, 4096')
        for m, so in enumerate(('s11', '0')):
            A(f'buffer_load_dwordx4 v[{112+4*(1-m)}:{115+4*(1-m)}], v7, s[56:59], {so} offen {nt}')
        for m, so in enumerate(('0', 's8', 's9', 's10')):
            A(f'buffer_load_dwordx4 v[{96+4*m}:{99+4*m}], v7, s[52:55], {so} offen {nt}')
        A('s_waitcnt vmcnt(6)')
        lok, lretry = self.label('L_qok'), self.label('L_qretry')
        self.poll_check_branch(['v83', 'v87', 'v91', 'v95'], 'v10', 'v11', lok)
        A(f's_mov_b32 s12, {self.bound}')
        A(f's_mov_b32 s13, {WS_QB - WS_QA}')
        A(f'{lretry}:')
        for ks in range(4):
            A(f's_add_u32 s14, s{68+ks}, s13')
            A(f'buffer_load_dwordx4 v[{80+4*ks}:{83+4*ks}], v8, s[40:43], s14 offen sc1')
        A(f's_xor_b32 s13, s13, {WS_QB - WS_QA}')
        A('s_waitcnt vmcnt(0)')
        self.poll_check_branch(['v83', 'v87', 'v91', 'v95'], 'v10', 'v11', lok)
        A(f's_sub_u32 s12, s12, 1\ns_cmp_lg_u32 s12, 0\ns_cbranch_scc1 {lretry}')
        A(f'{lok}:')
        self.stamp(3)
        A('v_xor_b32 v10, s62, v82\nv_xor_b32 v11, s62, v86\nv_or_b32 v10, v10, v11\nv_xor_b32 v11, s62, v90\nv_or_b32 v10, v10, v11\nv_xor_b32 v11, s62, v94\nv_or_b32 v10, v10, v11')
        A('v_cmp_ne_u32 vcc, 0, v10')
        A('v_add_f32 v80, v80, v84\nv_add_f32 v81, v81, v85\nv_add_f32 v88, v88, v92\nv_add_f32 v89, v89, v93')
        A('s_cmp_eq_u64 vcc, 0\ns_cselect_b32 s12, 1, 0')
        A('v_add_f32 v80, v80, v88\nv_add_f32 v81, v81, v89')
        A('s_lshl_b32 s13, s3, 2\nv_mov_b32 v10, s12\nv_mov_b32 v11, s13')
        A('v_cvt_pk_bf16_f32 v80, v80, v81')
        A(f'ds_write_b32 v11, v10 offset:{L_FLG}')
        A(f'ds_write_b16 v9, v80 offset:{L_Q}')
        A(f'ds_write_b16_d16_hi v9, v80 offset:{L_Q+16}')
        A('v_and_b32 v10, 3, v2\nv_lshlrev_b32 v10, 8, v10\nv_bfe_u32 v11, v2, 2, 2\nv_lshl_add_u32 v10, v11, 6, v10\nv_lshl_add_u32 v10, v4, 4, v10')
        A('s_waitcnt lgkmcnt(0)')
        A('s_barrier')
        A(f'ds_read_b128 v[120:123], v10 offset:{L_Q}')
        A(f'v_mov_b32 v11, 0\nds_read_b128 v[12:15], v11 offset:{L_FLG}')
        A('s_waitcnt lgkmcnt(0)')
        for u in range(8):
            A(f'v_mfma_f32_16x16x32_bf16 v[{124+4*u}:{127+4*u}], v[{16+4*u}:{19+4*u}], v[120:123], 0')
        A('v_and_b32 v12, v12, v13\nv_and_b32 v14, v14, v15\nv_and_b32 v12, v12, v14')
        A('s_nop 0')
        A('v_readfirstlane_b32 s61, v12')
        A('s_nop 4')
        for u in range(8):
            d = 124 + 4 * u
            A(f'v_add_f32_dpp v{80+u}, v{d+1}, v{d} row_shl:4 row_mask:0xf bank_mask:0xf')
        for u in range(8):
            d = 124 + 4 * u
            A(f'v_add_f32_dpp v{80+u}, v{d+2}, v{80+u} row_shl:8 row_mask:0xf bank_mask:0xf')
        for u in range(8):
            d = 124 + 4 * u
            A(f'v_add_f32_dpp v{80+u}, v{d+3}, v{80+u} row_shl:12 row_mask:0xf bank_mask:0xf')
        for w in range(4):
            A(f'v_cvt_pk_bf16_f32 v{88+w}, v{80+2*w}, v{81+2*w}')
        for w in range(4):
            A(f'v_lshlrev_b32 v{80+2*w}, 16, v{88+w}\nv_and_b32 v{81+2*w}, 0xffff0000, v{88+w}')
        for u in range(8):
            A(f'v_mul_f32 v{80+u}, {SCALE:#x}, v{80+u}')
        for w in range(4):
            A(f'v_cvt_pk_bf16_f32 v{88+w}, v{80+2*w}, v{81+2*w}')
        for w in range(4):
            A(f'v_lshlrev_b32 v{80+2*w}, 16, v{88+w}\nv_and_b32 v{81+2*w}, 0xffff0000, v{88+w}')
        A('v_max3_f32 v92, v80, v81, v82\nv_max3_f32 v93, v83, v84, v85\nv_max3_f32 v92, v92, v86, v87\nv_max_f32 v92, v92, v93')
        for sw in ('v_permlane16_swap_b32', 'v_permlane32_swap_b32'):
            A(f'v_mov_b32 v93, v92\ns_nop 1\n{sw} v92, v93\ns_nop 1\nv_max_f32 v92, v92, v93')
        for e in range(8):
            for w in range(4):
                sel = 's74' if (e & 1) else 's73'
                if e == 0 and w == 0:
                    A('s_mov_b32 s73, 0x05040100\ns_mov_b32 s74, 0x07060302')
                A(f'v_perm_b32 v{16+4*e+w}, v{48+4*(2*w+1)+(e>>1)}, v{48+4*(2*w)+(e>>1)}, {sel}')
        for u in range(8):
            A(f'v_sub_f32 v{80+u}, v{80+u}, v92')
        for u in range(8):
            A(f'v_mul_f32 v{80+u}, {L2E:#x}, v{80+u}')
        for u in range(8):
            A(f'v_exp_f32 v{80+u}, v{80+u}')
        A('s_nop 0')
        for w in range(4):
            A(f'v_cvt_pk_bf16_f32 v{120+w}, v{80+2*w}, v{81+2*w}')
        A('v_add_f32 v93, v80, v81\nv_add_f32 v94, v82, v83\nv_add_f32 v95, v84, v85\nv_add_f32 v88, v86, v87')
        for e in range(8):
            A(f'v_mfma_f32_16x16x32_bf16 v[{124+4*e}:{127+4*e}], v[{16+4*e}:{19+4*e}], v[120:123], 0')
        A('v_add_f32 v93, v93, v94\nv_add_f32 v95, v95, v88\nv_add_f32 v93, v93, v95')
        for sw in ('v_permlane16_swap_b32', 'v_permlane32_swap_b32'):
            A(f'v_mov_b32 v94, v93\ns_nop 1\n{sw} v93, v94\ns_nop 1\nv_add_f32 v93, v93, v94')
        A('v_and_b32 v10, 3, v2')
        A('s_lshl_b32 s6, s3, 11')
        A('v_lshlrev_b32 v11, 9, v10\nv_lshl_add_u32 v11, v4, 7, v11\nv_add_u32 v11, s6, v11')
        A('s_lshl_b32 s7, s3, 2\nv_lshlrev_b32 v12, 4, v10\nv_add_u32 v12, s7, v12')
        A('v_cmp_gt_u32 vcc, 4, v3\ns_and_saveexec_b64 s[76:77], vcc')
        for e in range(8):
            A(f'ds_write_b128 v11, v[{124+4*e}:{127+4*e}] offset:{L_OP + 16*e}')
        A(f'ds_write_b32 v12, v92 offset:{L_M}')
        A(f'ds_write_b32 v12, v93 offset:{L_L}')
        A('s_mov_b64 exec, s[76:77]')
        A('s_waitcnt lgkmcnt(0)')
        self.stamp(4)
        A('s_barrier')
        A('s_lshl_b32 s6, s3, 9\nv_lshlrev_b32 v10, 3, v2\nv_add_u32 v10, s6, v10')
        for w in range(4):
            A(f'ds_read_b64 v[{80+2*w}:{81+2*w}], v10 offset:{L_OP + w*2048}')
        A('s_lshl_b32 s6, s3, 4\nv_mov_b32 v11, s6')
        A(f'ds_read_b128 v[88:91], v11 offset:{L_M}')
        A(f'ds_read_b128 v[92:95], v11 offset:{L_L}')
        A('s_waitcnt lgkmcnt(0)')
        A('v_max3_f32 v12, v88, v89, v90\nv_max_f32 v12, v12, v91')
        for w in range(4):
            A(f'v_sub_f32 v{88+w}, v{88+w}, v12')
        for w in range(4):
            A(f'v_mul_f32 v{88+w}, {L2E:#x}, v{88+w}')
        for w in range(4):
            A(f'v_exp_f32 v{88+w}, v{88+w}')
        A('s_nop 0')
        A('v_mul_f32 v13, v88, v92\nv_fmac_f32 v13, v89, v93\nv_fmac_f32 v13, v90, v94\nv_fmac_f32 v13, v91, v95')
        A('v_mul_f32 v16, v88, v80\nv_mul_f32 v17, v88, v81')
        for w in range(1, 4):
            A(f'v_fmac_f32 v16, v{88+w}, v{80+2*w}\nv_fmac_f32 v17, v{88+w}, v{81+2*w}')
        A('v_rcp_f32 v14, v13\nv_log_f32 v15, v13')
        A(f'v_mul_f32 v12, {L2E:#x}, v12')
        A('v_mul_f32 v16, v16, v14\nv_mul_f32 v17, v17, v14\nv_add_f32 v18, v12, v15\nv_mov_b32 v19, s60')
        A('s_lshl_b32 s6, s63, 12\ns_lshl_b32 s7, s3, 10\ns_add_u32 s6, s6, s7')
        A(f's_add_u32 s6, s6, {WS_OS}')
        self.store_mode('v[16:19]', 'v5', 's6')
        self.stamp(5)
        A('v_lshlrev_b32 v10, 3, v4\nv_lshlrev_b32 v11, 2, v4')
        A('s_waitcnt vmcnt(0)')
        A('s_barrier')
        A(f'ds_read_b64 v[80:81], v10 offset:{L_COEF}')
        A(f'ds_read_b32 v82, v11 offset:{L_HC}')
        A('s_waitcnt lgkmcnt(0)')
        seq = [(96 + 4 * m, f'v{80 + (m >> 1)}', m & 1) for m in range(4)] + [(112 + 4 * m, 'v82', m) for m in range(2)]
        for k, (wreg, x, par) in enumerate(seq):
            b = 124 + 4 * (k % 3) + 4
            for w in range(4):
                A(f'v_perm_b32 v{b+w}, {x}, {x}, v{160+2*w+par}')
            A('s_nop 1')
            cin = '0' if k == 0 else 'v[124:127]'
            A(f'v_mfma_f32_16x16x32_bf16 v[124:127], v[{wreg}:{wreg+3}], v[{b}:{b+3}], {cin}')
        A('s_nop 7\ns_nop 1')
        A('v_mov_b32 v16, v124\nv_mov_b32 v17, v125')
        A('v_mov_b32_dpp v16, v126 row_shr:8 row_mask:0xf bank_mask:0xc')
        A('v_mov_b32_dpp v17, v127 row_shr:8 row_mask:0xf bank_mask:0xc')
        A('v_mov_b32 v18, 0\nv_mov_b32 v19, s60')
        A('s_lshl_b32 s6, s63, 12\ns_lshl_b32 s7, s3, 10\ns_add_u32 s6, s6, s7')
        A(f's_add_u32 s6, s6, {WS_L1}')
        self.store_mode('v[16:19]', 'v5', 's6')
        self.stamp(6)
        self.stamp_flush(7)
        A('s_endpgm')

    def q_path(self):
        A = self.A
        nt = self.nt
        A('L_q:')
        A('s_mov_b32 s44, s16\ns_mov_b32 s45, s17\ns_mov_b32 s46, 1024\ns_mov_b32 s47, 0x20000')
        A('v_lshlrev_b32 v5, 4, v2')
        A('buffer_load_dwordx4 v[8:11], v5, s[44:47], 0 offen')
        A('s_and_b32 s6, s5, 7\ns_lshl_b32 s7, s4, 3\ns_add_u32 s6, s6, s7\ns_lshl_b32 s6, s6, 7')
        A('s_lshr_b32 s7, s5, 3\ns_lshl_b32 s70, s7, 8\ns_lshl_b32 s7, s7, 20\ns_add_u32 s6, s6, s7')
        A(f's_add_u32 s48, s22, s6\ns_addc_u32 s49, s23, 0\ns_mov_b32 s50, {127*8192+128}\ns_mov_b32 s51, 0x20000')
        A('v_lshrrev_b32 v6, 3, v2\nv_lshlrev_b32 v6, 17, v6\nv_and_b32 v7, 7, v2\nv_lshl_add_u32 v6, v7, 4, v6')
        A('s_mov_b32 s8, 0')
        for m in range(16):
            A(f'buffer_load_dwordx4 v[{16+4*m}:{19+4*m}], v6, s[48:51], s8 offen {nt}')
            if m < 15:
                A('s_add_u32 s8, s8, 8192')
        A('s_lshl_b32 s6, s5, 5\nv_lshlrev_b32 v7, 1, v7\nv_add_u32 v7, s6, v7')
        A('buffer_load_ushort v166, v7, s[44:47], 0 offen')
        A('buffer_load_ushort v167, v7, s[44:47], 0 offen offset:16')
        A('s_barrier')
        A('s_waitcnt vmcnt(18)')
        self.layernorm(L_XN4)
        self.unit_core_off = 2
        self.unit_core2(L_XN4, 2)
        self.stamp(1)
        A('s_waitcnt lgkmcnt(0)')
        A(f's_add_u32 s60, s60, {TAGC}')
        A('v_mov_b32 v162, s62\nv_mov_b32 v163, s60')
        A('s_lshl_b32 s6, s63, 9')
        A(f's_add_u32 s7, s6, {WS_QA}\ns_add_u32 s9, s6, {WS_QB}')
        A('s_mov_b32 exec_lo, -1\ns_mov_b32 exec_hi, 0')
        A('buffer_store_dwordx4 v[160:163], v5, s[40:43], s7 offen')
        A('buffer_store_dwordx4 v[160:163], v5, s[40:43], s9 offen sc1')
        A('s_mov_b64 exec, 1')
        A('s_lshl_b32 s6, s4, 7\ns_add_u32 s6, s6, s5')
        A(f's_add_u32 s6, s6, {WS_HINT}')
        A('v_mov_b32 v12, s6\nv_mov_b32 v13, s60')
        A('buffer_store_byte v13, v12, s[40:43], 0 offen sc1')
        A('s_mov_b64 exec, -1')
        A('s_lshl_b32 s6, s4, 7')
        A(f's_add_u32 s6, s6, {WS_HINT}')
        A('s_add_u32 s72, s38, s6\ns_addc_u32 s73, s39, 0')
        A('s_and_b32 s6, s60, 0xff\ns_mul_i32 s74, s6, 0x01010101\ns_mov_b32 s75, s74')
        A('s_mov_b32 s12, 200')
        lh, lok = self.label('L_hint'), self.label('L_hintok')
        A(f'{lh}:')
        A('s_load_dwordx8 s[52:59], s[72:73], 0 glc')
        A('s_waitcnt lgkmcnt(0)')
        A('s_xor_b64 s[52:53], s[52:53], s[74:75]\ns_xor_b64 s[54:55], s[54:55], s[74:75]\ns_xor_b64 s[56:57], s[56:57], s[74:75]\ns_xor_b64 s[58:59], s[58:59], s[74:75]')
        A('s_or_b64 s[52:53], s[52:53], s[54:55]\ns_or_b64 s[56:57], s[56:57], s[58:59]\ns_or_b64 s[52:53], s[52:53], s[56:57]')
        A(f's_cmp_eq_u64 s[52:53], 0\ns_cbranch_scc1 {lok}')
        A(f's_sub_u32 s12, s12, 1\ns_cmp_lg_u32 s12, 0\ns_cbranch_scc1 {lh}')
        A(f'{lok}:')
        self.stamp(2)
        A('s_barrier')
        A('s_barrier')
        A(f'v_mov_b32 v11, 0\nds_read_b128 v[12:15], v11 offset:{L_FLG}')
        A('v_lshrrev_b32 v6, 3, v2\nv_lshlrev_b32 v6, 12, v6\nv_and_b32 v7, 7, v2\nv_lshl_add_u32 v6, v7, 4, v6')
        A('s_lshl_b32 s6, s4, 17\ns_lshl_b32 s7, s5, 7\ns_add_u32 s66, s6, s7')
        A('s_waitcnt lgkmcnt(0)')
        A('v_and_b32 v12, v12, v13\nv_and_b32 v14, v14, v15\nv_and_b32 v12, v12, v14')
        A('s_nop 0')
        A('v_readfirstlane_b32 s61, v12')
        A('s_barrier')
        self.gather4(WS_OS, 'L_os')
        self.stamp(3)
        A('v_max3_f32 v12, v18, v22, v26\nv_max_f32 v12, v12, v30')
        A('s_nop 0')
        self.red_hi3(['v12'], ['v13'], op='v_max_f32')
        for k in range(4):
            A(f'v_sub_f32 v{18+4*k}, v{18+4*k}, v12')
        for k in range(4):
            A(f'v_exp_f32 v{18+4*k}, v{18+4*k}')
        A('s_nop 0')
        A('v_add_f32 v13, v18, v22\nv_add_f32 v14, v26, v30\nv_add_f32 v13, v13, v14')
        A('v_mul_f32 v14, v18, v16\nv_mul_f32 v15, v18, v17')
        for k in range(1, 4):
            A(f'v_fmac_f32 v14, v{18+4*k}, v{16+4*k}\nv_fmac_f32 v15, v{18+4*k}, v{17+4*k}')
        A('s_nop 1')
        self.red_hi3(['v13', 'v14', 'v15'], ['v32', 'v33', 'v34'])
        A('v_rcp_f32 v13, v13\ns_nop 0')
        A('v_mul_f32 v14, v14, v13\nv_mul_f32 v15, v15, v13')
        A('v_cvt_pk_bf16_f32 v14, v14, v15')
        A('v_lshlrev_b32 v12, 2, v7')
        A('s_mov_b64 exec, 0xff')
        A(f'ds_write_b32 v12, v14 offset:{L_COEF}')
        A('s_mov_b64 exec, -1')
        A('s_waitcnt lgkmcnt(0)')
        A('s_barrier')
        self.stamp(4)
        self.gather4(WS_L1, 'L_l1')
        self.stamp(5)
        A('v_add_f32 v16, v16, v20\nv_add_f32 v17, v17, v21\nv_add_f32 v24, v24, v28\nv_add_f32 v25, v25, v29')
        A('v_add_f32 v16, v16, v24\nv_add_f32 v17, v17, v25')
        A('s_nop 1')
        self.red_hi3(['v16', 'v17'], ['v32', 'v33'])
        A('v_mov_b32 v18, 0\nv_mov_b32 v19, s60')
        A('s_lshl_b32 s6, s5, 3\ns_add_u32 s6, s6, s4\ns_lshl_b32 s6, s6, 7')
        A(f's_add_u32 s6, s6, {WS_L2}')
        A('v_lshlrev_b32 v12, 4, v7')
        A('s_mov_b64 exec, 0xff')
        A('buffer_store_dwordx4 v[16:19], v12, s[40:43], s6 offen sc1')
        A('s_mov_b64 exec, -1')
        lfin = self.label('L_fin')
        A(f's_and_b32 s6, s5, 7\ns_cmp_lg_u32 s6, s4\ns_cbranch_scc1 {lfin}')
        A('s_lshl_b32 s6, s5, 10')
        A(f's_add_u32 s6, s6, {WS_L2}')
        lp, lok = self.label('L_l2'), self.label('L_l2ok')
        A(f's_mov_b32 s12, {self.bound}')
        A(f'{lp}:')
        A('buffer_load_dwordx4 v[16:19], v5, s[40:43], s6 offen sc1')
        A('s_waitcnt vmcnt(0)')
        self.poll_check_branch(['v19'], 'v10', 'v11', lok)
        A(f's_sub_u32 s12, s12, 1\ns_cmp_lg_u32 s12, 0\ns_cbranch_scc1 {lp}')
        A(f'{lok}:')
        self.stamp(6)
        self.red_hi3(['v16', 'v17'], ['v32', 'v33'])
        A('v_lshlrev_b32 v166, 16, v166\nv_lshlrev_b32 v167, 16, v167')
        A('v_add_f32 v16, v16, v166\nv_add_f32 v17, v17, v167')
        A('v_cvt_pk_bf16_f32 v16, v16, v17')
        A('s_mov_b32 s44, s34\ns_mov_b32 s45, s35\ns_mov_b32 s46, 1024\ns_mov_b32 s47, 0x20000')
        A('s_lshl_b32 s6, s5, 5\nv_lshlrev_b32 v12, 1, v7\nv_add_u32 v12, s6, v12')
        A('s_mov_b64 exec, 0xff')
        A('buffer_store_short v16, v12, s[44:47], 0 offen')
        A('buffer_store_short_d16_hi v16, v12, s[44:47], 0 offen offset:16')
        A(f's_cmp_lg_u32 s2, 0\ns_cbranch_scc1 {lfin}')
        A('s_mov_b64 exec, 1')
        A(f'v_mov_b32 v12, {WS_EPOCH}\nv_mov_b32 v13, s60')
        A('buffer_store_dword v13, v12, s[40:43], 0 offen sc1')
        A(f'{lfin}:')
        self.stamp(7)
        self.stamp_flush(8)
        A('s_endpgm')

    def unit_core2(self, ldsbase, extra):
        A = self.A
        A('v_lshrrev_b32 v12, 3, v2\nv_lshlrev_b32 v12, 5, v12\nv_add_u32 v12, s70, v12')
        A(f'ds_read_b128 v[144:147], v12 offset:{ldsbase}')
        A(f'ds_read_b128 v[148:151], v12 offset:{ldsbase+16}')
        self.selectors(152, False)
        A('s_waitcnt lgkmcnt(0)')
        for m in range(16):
            for w in range(4):
                x = f'v{144 + (m >> 1)}'
                A(f'v_perm_b32 v{80+4*m+w}, {x}, {x}, v{152+2*w+(m&1)}')
        for m in range(16):
            A(f's_waitcnt vmcnt({15-m+extra})')
            cin = '0' if m == 0 else 'v[160:163]'
            A(f'v_mfma_f32_16x16x32_bf16 v[160:163], v[{16+4*m}:{19+4*m}], v[{80+4*m}:{83+4*m}], {cin}')
        A('s_nop 7\ns_nop 1')
        for r in range(4):
            A(f'v_mov_b32 v{144+r}, v{160+r}')
        A('s_nop 1')
        for r in range(4):
            A(f'v_permlane32_swap_b32 v{160+r}, v{144+r}')
        A('s_nop 1')
        for r in range(4):
            A(f'v_add_f32_dpp v{160+r}, v{144+r}, v{160+r} row_shl:8 row_mask:0xf bank_mask:0xf')
        A('s_nop 1')
        A('v_mov_b32_dpp v160, v162 row_shr:8 row_mask:0xf bank_mask:0xc')
        A('v_mov_b32_dpp v161, v163 row_shr:8 row_mask:0xf bank_mask:0xc')

    def gather4(self, base, pre):
        A = self.A
        lp, lok = self.label(pre), self.label(pre + 'ok')
        for k in range(4):
            A(f's_add_u32 s{68+k}, s66, {base + k*32768}')
        A(f's_mov_b32 s12, {self.bound}')
        A(f'{lp}:')
        for k in range(4):
            A(f'buffer_load_dwordx4 v[{16+4*k}:{19+4*k}], v6, s[40:43], s{68+k} offen sc1')
        A('s_waitcnt vmcnt(0)')
        self.poll_check_branch(['v19', 'v23', 'v27', 'v31'], 'v10', 'v11', lok)
        A(f's_sub_u32 s12, s12, 1\ns_cmp_lg_u32 s12, 0\ns_cbranch_scc1 {lp}')
        A(f'{lok}:')

    def f_path(self):
        A = self.A
        nt = self.nt
        A('L_f:')
        A('s_mov_b32 s44, s16\ns_mov_b32 s45, s17\ns_mov_b32 s46, 1024\ns_mov_b32 s47, 0x20000')
        A('v_lshlrev_b32 v5, 4, v2')
        A('buffer_load_dwordx4 v[8:11], v5, s[44:47], 0 offen')
        A('s_lshl_b32 s11, s64, 7\ns_and_b32 s12, s5, 3\ns_lshl_b32 s70, s12, 8')
        A(f's_mul_i32 s12, s12, {128*3584}\ns_add_u32 s11, s11, s12')
        A('s_cmp_eq_u32 s65, 0\ns_cselect_b32 s11, 0, s11')
        A('s_bitcmp1_b32 s5, 2\ns_cselect_b32 s52, s30, s28\ns_cselect_b32 s53, s31, s29')
        A('s_add_u32 s48, s52, s11\ns_addc_u32 s49, s53, 0\ns_mov_b32 s51, 0x20000')
        A(f's_cmp_eq_u32 s65, 0\ns_cselect_b32 s50, 0, {127*3584+128}')
        A(f'v_lshrrev_b32 v6, 3, v2\ns_mov_b32 s13, {16*3584}\nv_mul_lo_u32 v6, s13, v6\nv_and_b32 v7, 7, v2\nv_lshl_add_u32 v6, v7, 4, v6')
        A('s_mov_b32 s8, 0')
        for m in range(16):
            A(f'buffer_load_dwordx4 v[{16+4*m}:{19+4*m}], v6, s[48:51], s8 offen {nt}')
            if m < 15:
                A('s_add_u32 s8, s8, 3584')
        A('s_barrier')
        A('s_waitcnt vmcnt(16)')
        self.layernorm(L_XN5)
        self.unit_core2(L_XN5, 0)
        self.stamp(1)
        A('s_waitcnt lgkmcnt(0)')
        A(f's_add_u32 s60, s60, {TAGC}')
        A('v_mov_b32 v162, 0\nv_mov_b32 v163, s60')
        A('s_barrier')
        A('s_barrier')
        A(f'v_mov_b32 v11, 0\nds_read_b128 v[12:15], v11 offset:{L_FLG}')
        A('s_waitcnt lgkmcnt(0)')
        A('v_and_b32 v12, v12, v13\nv_and_b32 v14, v14, v15\nv_and_b32 v12, v12, v14')
        A('s_nop 0')
        A('v_readfirstlane_b32 s61, v12')
        A('s_lshl_b32 s6, s63, 9')
        A(f's_add_u32 s6, s6, {WS_FP}')
        A('s_mov_b32 exec_lo, -1\ns_mov_b32 exec_hi, 0')
        self.store_mode('v[160:163]', 'v5', 's6')
        A('s_mov_b64 exec, -1')
        A('s_barrier')
        lno, ldone = self.label('L_noffn'), self.label('L_ffndone')
        A(f's_cmp_eq_u32 s65, 0\ns_cbranch_scc1 {lno}')
        A('v_lshrrev_b32 v6, 3, v2\nv_lshlrev_b32 v6, 9, v6\nv_lshl_add_u32 v6, v7, 4, v6')
        A('s_and_b32 s6, s63, 0xfffffff8\ns_lshl_b32 s6, s6, 9\ns_bfe_u32 s7, s5, 0x20001\ns_lshl_b32 s7, s7, 7\ns_add_u32 s6, s6, s7')
        A(f's_add_u32 s6, s6, {WS_FP}')
        lp, lok = self.label('L_fp'), self.label('L_fpok')
        A(f's_mov_b32 s12, {self.bound}')
        A(f'{lp}:')
        A('buffer_load_dwordx4 v[16:19], v6, s[40:43], s6 offen sc1')
        A('s_waitcnt vmcnt(0)')
        self.poll_check_branch(['v19'], 'v10', 'v11', lok)
        A(f's_sub_u32 s12, s12, 1\ns_cmp_lg_u32 s12, 0\ns_cbranch_scc1 {lp}')
        A(f'{lok}:')
        A('s_bitcmp1_b32 s5, 0\ns_cselect_b64 vcc, -1, 0')
        A('v_cndmask_b32 v16, v16, v17, vcc')
        A('s_nop 1')
        A('v_add_f32_dpp v16, v16, v16 row_ror:8 row_mask:0xf bank_mask:0xf')
        A('v_mov_b32 v17, v16\ns_nop 1\nv_permlane16_swap_b32 v16, v17\ns_nop 1\nv_add_f32 v16, v16, v17')
        A('v_mov_b32 v17, v16\ns_nop 1\nv_permlane32_swap_b32 v16, v17')
        A('s_nop 1')
        A('v_cvt_pk_bf16_f32 v18, v16, v17')
        A('v_lshlrev_b32 v16, 16, v18\nv_and_b32 v17, 0xffff0000, v18')
        A(f'v_mul_f32 v18, {L2E ^ 0x80000000:#x}, v16')
        A('v_exp_f32 v18, v18\ns_nop 0')
        A('v_add_f32 v18, 1.0, v18')
        A('v_rcp_f32 v18, v18\ns_nop 0')
        A('v_mul_f32 v18, v16, v18')
        A('v_cvt_pk_bf16_f32 v18, v18, v18\nv_lshlrev_b32 v18, 16, v18')
        A('v_mul_f32 v18, v18, v17')
        A('v_cvt_pk_bf16_f32 v18, v18, v18')
        A(f's_branch {ldone}')
        A(f'{lno}:')
        A('v_mov_b32 v18, 0')
        A(f'{ldone}:')
        A('v_and_b32 v12, 3, v7\nv_lshlrev_b32 v12, 2, v12\nv_lshrrev_b32 v13, 2, v7\nv_lshl_add_u32 v12, v13, 1, v12')
        A('s_mov_b64 exec, 0xff')
        A(f'ds_write_b16 v12, v18 offset:{L_HC}')
        A('s_mov_b64 exec, -1')
        A('s_waitcnt lgkmcnt(0)')
        self.stamp(2)
        A('s_barrier')
        self.stamp_flush(3)
        A('s_endpgm')

    def text(self, vgpr=168):
        self.build()
        out = HEADER
        out += f'; @launch grid=(256,1,1) block=(384,1,1) lds={LDS_SIZE}\n'
        out += '.amdgcn_target "amdgcn-amd-amdhsa--gfx950"\n.text\n'
        out += f'.globl {NAME}\n.p2align 8\n.type {NAME},@function\n{NAME}:\n'
        out += '\n'.join(self.c) + '\n'
        out += f'''.section .rodata,"a"
.p2align 6
.amdhsa_kernel {NAME}
  .amdhsa_next_free_vgpr {vgpr}
  .amdhsa_next_free_sgpr 100
  .amdhsa_accum_offset {vgpr}
  .amdhsa_group_segment_fixed_size 0
  .amdhsa_kernarg_size 96
  .amdhsa_user_sgpr_count 2
  .amdhsa_user_sgpr_kernarg_segment_ptr 1
  .amdhsa_system_sgpr_workgroup_id_x 1
.end_amdhsa_kernel
'''
        return out


if __name__ == '__main__':
    import argparse
    ap = argparse.ArgumentParser()
    ap.add_argument('-o', default='parallel_sum__sliding_block_cached__glu_gated_swiglu__decode.s')
    ap.add_argument('--nt', default='nt')
    ap.add_argument('--stamps', action='store_true')
    a = ap.parse_args()
    open(a.o, 'w').write(Gen(nt=a.nt, stamps=a.stamps).text())
```
